```python
import torch

def _softmax(x, axis=-1):
    return torch.softmax(x, dim=axis)
def _gelu(x):
    return torch.nn.functional.gelu(x, approximate="tanh")
def _silu(x):
    return torch.nn.functional.silu(x)
def _sigmoid(x):
    return torch.sigmoid(x)
def _layernorm(x, axis=-1, eps=1e-5):
    m = x.mean(dim=axis, keepdim=True)
    v = x.var(dim=axis, keepdim=True, unbiased=False)
    return (x - m) / torch.sqrt(v + eps)
def _scatter_add(tgt, idx, src, axis=0):
    return tgt.clone().index_add_(axis, idx, src)
def _segment_sum(src, seg, n):
    out = torch.zeros((n,) + src.shape[1:], dtype=src.dtype)
    return out.index_add_(0, seg, src)
def _pad(x, pw):
    flat = tuple(v for pair in reversed(pw) for v in pair)
    return torch.nn.functional.pad(x, flat)

kernel_name = 'concat_heads__mha_block_cached__mha_block_cached__near_ridge'

def setup_inputs():

    _w = (lambda a: (lambda t: t.to(torch.bfloat16) if t.is_floating_point() else t)(torch.as_tensor(a)))
    def _A_setup():
        B, Sq, D = 8, 224, 1024
        H, Sk, Dh = 32, 1024, 128
        return {
            "x": _w((lambda *s: torch.randn(*s, dtype=torch.bfloat16) * 0.8)(B, Sq, D)),
            "k_cache": _w((lambda *s: torch.randn(*s, dtype=torch.bfloat16) * 0.8)(B, H, Sk, Dh)),
            "v_cache": _w((lambda *s: torch.randn(*s, dtype=torch.bfloat16) * 0.05)(B, H, Sk, Dh)),
            "wq": _w((lambda *s: torch.randn(*s, dtype=torch.bfloat16) * 0.8)(D, H * Dh) * (D ** -0.5)),
            "wo": _w((lambda *s: torch.randn(*s, dtype=torch.bfloat16) * 0.05)(H * Dh, D) * ((H * Dh) ** -0.5)),
        }
    _A_in = _A_setup()

    def _B_setup():
        B, Sq, D = 8, 224, 1024
        H, Sk, Dh = 32, 1024, 128
        return {
            "x": _w((lambda *s: torch.randn(*s, dtype=torch.bfloat16) * 0.8)(B, Sq, D)),
            "k_cache": _w((lambda *s: torch.randn(*s, dtype=torch.bfloat16) * 0.8)(B, H, Sk, Dh)),
            "v_cache": _w((lambda *s: torch.randn(*s, dtype=torch.bfloat16) * 0.05)(B, H, Sk, Dh)),
            "wq": _w((lambda *s: torch.randn(*s, dtype=torch.bfloat16) * 0.8)(D, H * Dh) * (D ** -0.5)),
            "wo": _w((lambda *s: torch.randn(*s, dtype=torch.bfloat16) * 0.05)(H * Dh, D) * ((H * Dh) ** -0.5)),
        }
    _B_in = _B_setup()

    return {
        "A_x": _A_in["x"],
        "A_k_cache": _A_in["k_cache"],
        "A_v_cache": _A_in["v_cache"],
        "A_wq": _A_in["wq"],
        "A_wo": _A_in["wo"],
        "B_x": _B_in["x"],
        "B_k_cache": _B_in["k_cache"],
        "B_v_cache": _B_in["v_cache"],
        "B_wq": _B_in["wq"],
        "B_wo": _B_in["wo"],
    }

def reference(A_x, A_k_cache, A_v_cache, A_wq, A_wo, B_x, B_k_cache, B_v_cache, B_wq, B_wo):
    def _A_ref(x, k_cache, v_cache, wq, wo):
        B, Sq, D = x.shape
        H, Dh = 32, 128
        q = (lambda x, *d: x.permute(*d))((x @ wq).reshape(B, Sq, H, Dh), 0, 2, 1, 3)
        scores = torch.einsum("bhqd,bhkd->bhqk", q, k_cache) * (Dh ** -0.5)
        p = _softmax(scores, axis=-1)
        o = torch.einsum("bhqk,bhkd->bhqd", p, v_cache)
        return (lambda x, *d: x.permute(*d))(o, 0, 2, 1, 3).reshape(B, Sq, H * Dh) @ wo

    def _B_ref(x, k_cache, v_cache, wq, wo):
        B, Sq, D = x.shape
        H, Dh = 32, 128
        q = (lambda x, *d: x.permute(*d))((x @ wq).reshape(B, Sq, H, Dh), 0, 2, 1, 3)
        scores = torch.einsum("bhqd,bhkd->bhqk", q, k_cache) * (Dh ** -0.5)
        p = _softmax(scores, axis=-1)
        o = torch.einsum("bhqk,bhkd->bhqd", p, v_cache)
        return (lambda x, *d: x.permute(*d))(o, 0, 2, 1, 3).reshape(B, Sq, H * Dh) @ wo

    a = _A_ref(A_x, A_k_cache, A_v_cache, A_wq, A_wo)
    b = _B_ref(B_x, B_k_cache, B_v_cache, B_wq, B_wo)
    return torch.concatenate([a, b], axis=-1)
```

```python
import re
from collections import defaultdict

REG_RE = re.compile(r"^(v|a|s)\[(\d+):(\d+)\]$|^(v|a|s)(\d+)$")


def regs_of(tok):
    tok = tok.strip()
    neg = tok.lstrip("-")
    if neg.startswith("abs(") and neg.endswith(")"):
        neg = neg[4:-1]
    if neg.startswith("|") and neg.endswith("|"):
        neg = neg[1:-1]
    m = REG_RE.match(neg)
    if m:
        if m.group(1):
            return [f"{m.group(1)}{i}" for i in range(int(m.group(2)), int(m.group(3)) + 1)]
        return [f"{m.group(4)}{m.group(5)}"]
    if neg == "vcc":
        return ["vcc"]
    if neg in ("vcc_lo", "vcc_hi"):
        return ["vcc"]
    if neg == "exec":
        return ["exec"]
    if neg == "m0":
        return ["m0"]
    return []


def split_ops(s):
    out, depth, cur = [], 0, ""
    for ch in s:
        if ch in "[(":
            depth += 1
        if ch in "])":
            depth -= 1
        if ch == "," and depth == 0:
            out.append(cur.strip())
            cur = ""
        else:
            cur += ch
    if cur.strip():
        out.append(cur.strip())
    return out


TRANS = ("v_exp_f32", "v_log_f32", "v_rcp_f32", "v_rsq_f32", "v_sqrt_f32")
SCC_WRITERS = ("s_add_u32", "s_sub_u32", "s_addc_u32", "s_subb_u32", "s_add_i32", "s_sub_i32", "s_and_b32", "s_or_b32",
               "s_xor_b32", "s_lshl_b32", "s_lshr_b32", "s_and_b64", "s_or_b64", "s_min_u32", "s_max_u32",
               "s_lshl_add_u32", "s_lshl1_add_u32", "s_lshl2_add_u32", "s_lshl3_add_u32", "s_lshl4_add_u32", "s_bfe_u32",
               "s_addk_i32", "s_andn2_b64", "s_not_b32", "s_ashr_i32")


class Ins:
    def __init__(self, text, **meta):
        self.text = text.strip()
        self.meta = meta
        self.parse()

    def parse(self):
        t = self.text
        self.rd, self.wr = set(), set()
        self.srcA, self.srcB, self.srcC = [], [], []
        if t.endswith(":"):
            self.kind, self.mn = "label", ""
            return
        if t.startswith(".") or t.startswith(";"):
            self.kind, self.mn = "dir", ""
            return
        parts = t.split(None, 1)
        mn = parts[0]
        self.mn = mn
        rest = parts[1] if len(parts) > 1 else ""
        ops = split_ops(rest)
        mods = []
        if ops:
            last = ops[-1].split()
            if len(last) > 1:
                ops[-1] = last[0]
                mods = last[1:]
        self.ops, self.mods = ops, mods
        R = lambda i: regs_of(ops[i]) if i < len(ops) else []
        if mn.startswith("v_mfma"):
            self.kind = "mfma"
            self.passes = 8 if "32x32" in mn else 4
            self.wr |= set(R(0))
            self.srcA, self.srcB, self.srcC = R(1), R(2), R(3)
            self.rd |= set(R(1)) | set(R(2)) | set(R(3)) | {"exec"}
        elif mn.startswith("ds_read"):
            self.kind = "ds_r"
            self.wr |= set(R(0))
            self.rd |= set(R(1)) | {"exec"}
        elif mn.startswith("ds_write"):
            self.kind = "ds_w"
            for i in range(len(ops)):
                self.rd |= set(R(i))
            self.rd.add("exec")
        elif mn.startswith("buffer_load"):
            if "lds" in mods:
                self.kind = "dma"
                for i in range(len(ops)):
                    self.rd |= set(R(i))
                self.rd.add("m0")
            else:
                self.kind = "vm_ld"
                self.wr |= set(R(0))
                for i in range(1, len(ops)):
                    self.rd |= set(R(i))
            self.rd.add("exec")
        elif mn.startswith("global_load"):
            self.kind = "vm_ld"
            self.wr |= set(R(0))
            for i in range(1, len(ops)):
                self.rd |= set(R(i))
            self.rd.add("exec")
        elif mn.startswith("buffer_store") or mn.startswith("global_store"):
            self.kind = "vm_st"
            for i in range(len(ops)):
                self.rd |= set(R(i))
            self.rd.add("exec")
            self.st_data = set(R(0) if mn.startswith("buffer") else R(1))
        elif mn.startswith("buffer_atomic") or mn.startswith("global_atomic"):
            self.kind = "vm_st"
            for i in range(len(ops)):
                self.rd |= set(R(i))
            self.rd.add("exec")
            self.st_data = set()
            if "sc0" in mods:
                self.kind = "vm_ld"
                self.wr |= set(R(0))
        elif mn in ("buffer_wbl2", "buffer_inv"):
            self.kind = "vm_st"
            self.st_data = set()
        elif mn.startswith("s_load") or mn in ("s_memtime", "s_memrealtime"):
            self.kind = "smem"
            self.wr |= set(R(0))
            for i in range(1, len(ops)):
                self.rd |= set(R(i))
        elif mn == "s_waitcnt":
            self.kind = "wait"
        elif mn == "s_barrier":
            self.kind = "barrier"
        elif mn == "s_nop":
            self.kind = "nop"
            self.n = int(ops[0], 0) + 1
        elif mn in ("s_endpgm", "s_setprio", "s_sleep"):
            self.kind = "misc"
        elif mn.startswith("s_cbranch") or mn == "s_branch":
            self.kind = "branch"
            if "scc" in mn:
                self.rd.add("scc")
            if "vcc" in mn:
                self.rd.add("vcc")
            if "exec" in mn:
                self.rd.add("exec")
        elif mn.startswith("s_cmp"):
            self.kind = "salu"
            for i in range(len(ops)):
                self.rd |= set(R(i))
            self.wr.add("scc")
        elif mn.startswith("s_"):
            self.kind = "salu"
            self.wr |= set(R(0))
            for i in range(1, len(ops)):
                self.rd |= set(R(i))
            if mn in SCC_WRITERS or "saveexec" in mn:
                self.wr.add("scc")
            if mn in ("s_addc_u32", "s_subb_u32", "s_cselect_b32", "s_cselect_b64"):
                self.rd.add("scc")
            if mn in ("s_addk_i32", "s_mulk_i32"):
                self.rd |= set(R(0))
            if "saveexec" in mn:
                self.wr.add("exec")
                self.rd.add("exec")
            if mn == "s_getreg_b32":
                self.rd = set()
        elif mn.startswith("v_"):
            base = re.sub(r"_(e32|e64|dpp|sdwa)$", "", mn)
            self.kind = "trans" if base in TRANS else "valu"
            self.rd.add("exec")
            if base.startswith("v_permlane") or base.startswith("v_swap"):
                self.wr |= set(R(0)) | set(R(1))
                self.rd |= set(R(0)) | set(R(1))
                self.permlane = base.startswith("v_permlane")
            elif base in ("v_add_co_u32", "v_addc_co_u32", "v_sub_co_u32"):
                self.wr |= set(R(0)) | set(R(1))
                for i in range(2, len(ops)):
                    self.rd |= set(R(i))
            else:
                self.wr |= set(R(0))
                for i in range(1, len(ops)):
                    self.rd |= set(R(i))
                if base.startswith("v_fmac") or base == "v_writelane_b32":
                    self.rd |= set(R(0))
                if base.startswith("v_cmpx"):
                    self.wr.add("exec")
        else:
            raise ValueError("unknown instruction: " + t)

    def __repr__(self):
        return self.text


class Wait(Ins):
    def __init__(self, vm=False, lg=False, vm_tags=(), lg_all=False, vm_all=False, vm_max=None):
        self.vm, self.lg, self.vm_tags, self.lg_all, self.vm_all = vm, lg, list(vm_tags), lg_all, vm_all
        self.vm_max = vm_max
        self.nvm, self.nlg = None, None
        self.text = "s_waitcnt ?"
        self.meta = {}
        self.kind, self.mn = "wait", "s_waitcnt"
        self.rd, self.wr = set(), set()
        self.auto = True

    def final_text(self):
        p = []
        if self.vm:
            p.append(f"vmcnt({min(63, self.nvm if self.nvm is not None else 63)})")
        if self.lg:
            p.append(f"lgkmcnt({min(15, self.nlg if self.nlg is not None else 15)})")
        return "s_waitcnt " + " ".join(p)


class Loop:
    def __init__(self, label, body, trips):
        self.label, self.body, self.trips = label, body, trips


class Prog:
    def __init__(self, name):
        self.name = name
        self.items = []
        self.stack = [self.items]

    def add(self, x, **meta):
        if isinstance(x, str):
            for line in x.split("\n"):
                line = line.strip()
                if line:
                    self.stack[-1].append(Ins(line, **meta))
        elif isinstance(x, (list, tuple)):
            for y in x:
                self.add(y, **meta)
        elif x is not None:
            self.stack[-1].append(x)

    __call__ = add

    def begin_loop(self, label, trips):
        lp = Loop(label, [], trips)
        self.stack[-1].append(lp)
        self.stack.append(lp.body)
        return lp

    def end_loop(self):
        self.stack.pop()

    def trace(self, items=None, it=None, skip_side=True):
        out = []
        it = it or {}
        for x in (self.items if items is None else items):
            if isinstance(x, Loop):
                for k in range(x.trips):
                    d = dict(it)
                    d[x.label] = k
                    out += self.trace(x.body, d)
            elif isinstance(x, Side):
                continue
            else:
                out.append((x, it))
        return out

    def text(self, items=None):
        L = []
        for x in (self.items if items is None else items):
            if isinstance(x, Loop):
                L.append(f"{x.label}:")
                L.append(self.text(x.body))
            elif isinstance(x, Side):
                L.append(x.prog.text())
            elif isinstance(x, Wait):
                L.append("    " + x.final_text())
            elif x.kind == "label":
                L.append(x.text)
            else:
                L.append("    " + x.text)
        return "\n".join(L)


class Side:
    def __init__(self, prog):
        self.prog = prog


def ev(tag, it):
    if tag is None:
        return None
    return tag(it) if callable(tag) else tag


def parse_wait(text):
    vm = re.search(r"vmcnt\((\d+)\)", text)
    lg = re.search(r"lgkmcnt\((\d+)\)", text)
    return (int(vm.group(1)) if vm else None, int(lg.group(1)) if lg else None)


VM_KINDS = ("dma", "vm_ld", "vm_st")
LG_KINDS = ("ds_r", "ds_w", "smem")


def resolve_waits(trace):
    n = len(trace)
    for cls, kinds, fld, flag in (("vm", VM_KINDS, "nvm", "vm"), ("lg", LG_KINDS, "nlg", "lg")):
        ops = []
        pending = {}
        last_wait = None
        covered = 0
        tagpos = {}
        for pos, (x, it) in enumerate(trace):
            if x.kind == "wait":
                if isinstance(x, Wait):
                    if getattr(x, flag):
                        last_wait = (x, len(ops))
                        need = None
                        if cls == "lg" and x.lg_all:
                            need = 0
                        if cls == "vm" and x.vm_all:
                            need = 0
                        if cls == "vm":
                            for tg in x.vm_tags:
                                t = ev(tg, it)
                                if t is None:
                                    continue
                                if t not in tagpos:
                                    raise AssertionError(f"wait needs tag {t} that was never issued")
                                k = len(ops) - 1 - tagpos[t]
                                need = k if need is None else min(need, k)
                            if x.vm_max is not None:
                                need = x.vm_max if need is None else min(need, x.vm_max)
                        if need is not None:
                            cur = getattr(x, fld)
                            setattr(x, fld, need if cur is None else min(cur, need))
                else:
                    v = parse_wait(x.text)[0 if cls == "vm" else 1]
                    if v is not None:
                        covered = max(covered, len(ops) - v)
                continue
            touched = (x.rd | x.wr) if hasattr(x, "rd") else set()
            for r in touched:
                if r in pending:
                    k = pending[r]
                    if k >= covered:
                        if last_wait is None or k >= last_wait[1]:
                            raise AssertionError(f"[{cls}] {x.text}: register {r} pending from {trace[ops[k]][0].text} with no wait point between (pos {pos})")
                        w, nb = last_wait
                        need = nb - 1 - k
                        if any(trace[ops[j]][0].kind == "smem" for j in range(covered, nb)):
                            need = 0
                        cur = getattr(w, fld)
                        setattr(w, fld, need if cur is None else min(cur, need))
                    del pending[r]
            if x.kind in kinds:
                ops.append(pos)
                for r in x.wr:
                    pending[r] = len(ops) - 1
                t = ev(x.meta.get("tag"), it)
                if t is not None:
                    tagpos[t] = len(ops) - 1


def check_trace(trace, verbose=False):
    errs = []
    vm_q, lg_q = [], []
    pend = {}
    st = 0
    last_mfma_wr = {}
    last_mfma_c = {}
    last_valu_wr = {}
    last_trans_wr = {}
    last_valu_swr = {}
    last_salu_m0 = -99
    last_store = {}
    last_exec_valu = -99
    done_vm, done_lg = set(), set()
    vis_dma = set()
    vis_rd = set()
    lds_w = []
    lds_r = []
    maxvm = maxlg = 0
    last_writer = {}
    for pos, (x, it) in enumerate(trace):
        k = x.kind
        if k in ("label", "dir"):
            continue
        if k == "wait":
            vm, lg = parse_wait(x.final_text() if isinstance(x, Wait) else x.text)
            if vm is not None:
                while len(vm_q) > vm:
                    p = vm_q.pop(0)
                    done_vm.add(p)
                    for r in trace[p][0].wr:
                        if pend.get(r) == p:
                            del pend[r]
            if lg is not None:
                if any(trace[p][0].kind == "smem" for p in lg_q) and lg > 0:
                    pass
                else:
                    while len(lg_q) > lg:
                        p = lg_q.pop(0)
                        done_lg.add(p)
                        for r in trace[p][0].wr:
                            if pend.get(r) == p:
                                del pend[r]
            st += 1
            continue
        if k == "barrier":
            vis_dma |= done_vm | done_lg
            vis_rd |= done_lg
            st += 1
            continue
        if k == "nop":
            st += x.n
            continue

        def need(d, r, n, what):
            if r in d and st - d[r][0] - 1 < n:
                errs.append(f"pos {pos}: {x.text}: {what} on {r}: {st - d[r][0] - 1} < {n} states (producer {d[r][2] if len(d[r]) > 2 else ''})")

        for r in x.rd | x.wr:
            if r in pend:
                errs.append(f"pos {pos}: {x.text}: {r} still pending from {trace[pend[r]][0].text}")
        for r, pr in x.meta.get("prod", {}).items():
            if last_writer.get(r) is not pr:
                errs.append(f"pos {pos}: {x.text}: {r} was last written by {last_writer.get(r)}, expected {pr}")
        for r in x.wr:
            last_writer[r] = x
        if k == "mfma":
            for r in x.srcA + x.srcB:
                if r in last_mfma_wr:
                    need(last_mfma_wr, r, last_mfma_wr[r][1] + 4, "mfma D -> A/B")
                need(last_valu_wr, r, 2, "valu -> mfma")
            for r in x.srcC:
                need(last_valu_wr, r, 2, "valu -> mfma C")
                if r in last_mfma_wr:
                    prod = last_mfma_wr[r][2]
                    same = prod.wr == set(x.srcC) and prod.passes == x.passes
                    if not same:
                        need(last_mfma_wr, r, last_mfma_wr[r][1] + 2, "mfma D -> overlapped C")
            cset = set(x.srcC)
            for r in x.wr:
                if r in last_mfma_wr and r not in cset:
                    need(last_mfma_wr, r, last_mfma_wr[r][1] + 2, "mfma D -> mfma D (WAW)")
            if st - last_exec_valu - 1 < 4:
                errs.append(f"pos {pos}: {x.text}: exec write -> mfma")
        else:
            isv = k in ("valu", "trans")
            for r in x.rd | x.wr:
                if r in last_mfma_wr:
                    need(last_mfma_wr, r, last_mfma_wr[r][1] + 4, "mfma D -> other")
            if isv:
                for r in x.wr:
                    if r in last_mfma_c:
                        need(last_mfma_c, r, last_mfma_c[r][1] - 1, "mfma C WAR")
                    need(last_store, r, 2, "store data WAR")
                if k == "valu":
                    for r in x.rd:
                        need(last_trans_wr, r, 1, "trans -> valu")
                if getattr(x, "permlane", False):
                    for r in x.rd:
                        need(last_valu_wr, r, 2, "valu -> permlane")
                if x.mn.startswith("v_readfirstlane") or x.mn.startswith("v_readlane"):
                    for r in x.rd:
                        need(last_valu_wr, r, 1, "valu -> readlane")
                if "dpp" in x.mn or any(m.startswith("row_") or m.startswith("quad_perm") for m in x.mods):
                    for r in x.rd:
                        need(last_valu_wr, r, 2, "valu -> dpp")
                for r in x.rd:
                    if r[0] == "s" or r == "vcc":
                        need(last_valu_swr, r, 2, "valu sgpr -> valu")
            if k in ("dma", "vm_ld", "vm_st"):
                for r in x.rd:
                    if r[0] == "s":
                        need(last_valu_swr, r, 5, "valu sgpr -> vmem")
                for r in x.wr:
                    need(last_store, r, 1, "store data WAR")
            if k in ("ds_r", "ds_w", "dma", "vm_ld", "vm_st"):
                for r in x.rd:
                    pass
            if k == "salu" or k == "smem" or k == "branch":
                for r in x.rd:
                    if r[0] == "s" or r == "vcc":
                        need(last_valu_swr, r, 1 if k != "branch" else 1, "valu sgpr -> salu (pad)")
            if k == "dma" and st - last_salu_m0 - 1 < 1:
                errs.append(f"pos {pos}: {x.text}: m0 write -> dma")
        lds = x.meta.get("lds")
        if lds is not None:
            lo, hi, tag, priv = ev(lds, it)
            if k in ("dma", "ds_w"):
                for (p, a, b, pv) in lds_r:
                    if a < hi and lo < b:
                        ok = (p in done_lg) if (priv and pv) else (p in vis_rd)
                        if not ok:
                            errs.append(f"pos {pos}: {x.text}: LDS WAR on [{lo},{hi}) vs read at {p} {trace[p][0].text}")
                for (p, a, b, tg, pv) in lds_w:
                    if a < hi and lo < b and tg != tag:
                        ok = (p in done_vm or p in done_lg) if (priv and pv) else (p in vis_dma)
                        if not ok:
                            errs.append(f"pos {pos}: {x.text}: LDS WAW on [{lo},{hi}) tag {tag} vs {tg} at {p}")
                nr = []
                for e in lds_r:
                    if e[1] < hi and lo < e[2]:
                        if e[1] < lo:
                            nr.append((e[0], e[1], lo, e[3]))
                        if hi < e[2]:
                            nr.append((e[0], hi, e[2], e[3]))
                    else:
                        nr.append(e)
                lds_r = nr
                nw = []
                for e in lds_w:
                    if e[1] < hi and lo < e[2] and e[3] != tag:
                        if e[1] < lo:
                            nw.append((e[0], e[1], lo, e[3], e[4]))
                        if hi < e[2]:
                            nw.append((e[0], hi, e[2], e[3], e[4]))
                    else:
                        nw.append(e)
                lds_w = nw
                lds_w.append((pos, lo, hi, tag, priv))
            else:
                hit = [e for e in lds_w if e[1] < hi and lo < e[2]]
                if tag is not None:
                    if not hit:
                        errs.append(f"pos {pos}: {x.text}: LDS read of [{lo},{hi}) tag {tag}: never written")
                    for (p, a, b, tg, pv) in hit:
                        if tg != tag:
                            errs.append(f"pos {pos}: {x.text}: LDS read of [{lo},{hi}) wants {tag} finds {tg}")
                        else:
                            ok = (p in done_vm or p in done_lg) if (priv and pv) else (p in vis_dma)
                            if not ok:
                                errs.append(f"pos {pos}: {x.text}: LDS RAW on [{lo},{hi}) tag {tag} not visible (writer {p})")
                lds_r.append((pos, lo, hi, priv))
        if k == "mfma":
            for r in x.wr:
                last_mfma_wr[r] = (st, x.passes, x)
                last_valu_wr.pop(r, None)
            for r in x.srcC:
                last_mfma_c[r] = (st, x.passes, x)
        else:
            for r in x.wr:
                last_mfma_wr.pop(r, None)
            if k in ("valu", "trans"):
                for r in x.wr:
                    if r[0] in "va":
                        last_valu_wr[r] = (st, 0, x)
                        if k == "trans":
                            last_trans_wr[r] = (st, 0, x)
                        else:
                            last_trans_wr.pop(r, None)
                    elif r == "exec":
                        last_exec_valu = st
                    else:
                        last_valu_swr[r] = (st, 0, x)
            if k in ("salu", "smem"):
                for r in x.wr:
                    last_valu_swr.pop(r, None)
                if "m0" in x.wr:
                    last_salu_m0 = st
            if k == "vm_st" and len(x.st_data) >= 3:
                for r in x.st_data:
                    last_store[r] = (st, 0, x)
        if k in VM_KINDS:
            vm_q.append(pos)
            maxvm = max(maxvm, len(vm_q))
            for r in x.wr:
                pend[r] = pos
        if k in LG_KINDS:
            lg_q.append(pos)
            maxlg = max(maxlg, len(lg_q))
            for r in x.wr:
                pend[r] = pos
        st += 1
        if len(errs) > 30:
            break
    if verbose:
        print(f"  trace {len(trace)} instrs, max vm outstanding {maxvm}, max lgkm outstanding {maxlg}")
    return errs


class Gaps:
    def __init__(self, mf):
        self.mf = mf
        self.sc = [[] for _ in mf]
        self.ve = [[] for _ in mf]

    @staticmethod
    def cost(x):
        if x.kind == "trans":
            return 8
        if x.kind in ("dma", "vm_ld", "vm_st"):
            return 8
        return 4

    def load(self, g):
        return sum(self.cost(x) for x in self.ve[g]) + 4 * max(0, len(self.sc[g]) - 1)

    def put_s(self, g, x):
        self.sc[g].append(x if isinstance(x, Ins) else Ins(x))

    def put_v(self, g, x):
        self.ve[g].append(x if isinstance(x, Ins) else Ins(x))

    def free_s(self, g, lo=0, step=-1):
        while lo <= g < len(self.mf):
            if not self.sc[g]:
                return g
            g += step
        raise AssertionError("no scalar slot")

    def emit(self, P):
        for g, m in enumerate(self.mf):
            P(m)
            for x in self.sc[g]:
                P(x)
            order = {"ds_r": 0, "ds_w": 0, "dma": 0, "vm_ld": 0, "vm_st": 0}
            for x in sorted(self.ve[g], key=lambda y: order.get(y.kind, 1)):
                P(x)

    def overflow(self):
        return sum(max(0, self.load(g) - 8) for g in range(len(self.mf)))
```

```python
import sys
from asmgen import *

NAME = "concat_heads__mha_block_cached__mha_block_cached__near_ridge"
CFG = dict(kv="nt", x="", wq="", ost="", old="", wo="", outst="", stamp=False)

QSCALE = 0x3E0293EE
L_LO, L_HI = 0x2B800000, 0x53800000

ATT_SLOT = 35840
KT, VT = 8704, 9216
KP, VP = 1088, 1152
Q0, QSLOT = 35840, 63360
WQT, XOFF, XP = 8224, 32896, 1088
LDS1 = 163840
LDS2 = 147456


def r4(p, i):
    return f"{p}[{i}:{i + 3}]"


def r2(p, i):
    return f"{p}[{i}:{i + 1}]"


def mfma(d, a, b, c=None):
    return Ins(f"v_mfma_f32_16x16x32_bf16 {d}, {a}, {b}, {d if c is None else c}")


def mod(x):
    return (" " + x) if x else ""


class K1:
    SX, SWQ, SKV, SO = 4, 8, 12, 16
    sWV, sHH, sRH = 28, 29, 30
    sXo, sWo, sKVo, sT = 46, 47, 48, 49
    sWQd, sXd, sKVd, sPad, sPad4 = 50, 51, 52, 53, 54
    sCnt, sC = 55, 56
    sT2 = 58
    vWQr = 1
    vXr = 9
    vWQg, vXg, vKVg = 11, 12, 13
    vKr = 14
    vVr = 16
    vL = 24
    vSt = 31
    vS = 32
    vT = 48
    vP = 56
    vM = 1

    @staticmethod
    def O(qt, dt):
        return r4("v", 64 + (qt * 8 + dt) * 4) if qt < 6 else r4("a", dt * 4)

    @staticmethod
    def Q(qt, s):
        return r4("a", 32 + (qt * 4 + s) * 4)

    @staticmethod
    def Kf(t, s):
        return 144 + (t * 4 + s) * 4

    @staticmethod
    def Vf(par, dt):
        return 176 + (par * 8 + dt) * 4

    @staticmethod
    def Af(par, dt, u):
        i = dt * 2 + u
        return ("a", 32 + i * 4) if par else ("a", 144 + i * 4)

    @staticmethod
    def Bf(par, qt, u):
        i = qt * 2 + u
        if par:
            return ("a", 96 + i * 4) if i < 12 else ("a", 240 + (i - 12) * 4)
        if i < 8:
            return ("a", 208 + i * 4)
        if i < 10:
            return ("a", 248 + (i - 8) * 4)
        return ("v", 32 + (i - 10) * 4)

    def __init__(self, cfg):
        self.cfg = cfg
        self.P = Prog("k1")

    def q_dmas(self, slot, tag):
        out = []
        base = Q0 + slot * QSLOT
        lds = lambda it, tag=tag: (base, base + QSLOT, ev(tag, it), False)
        for u in range(2):
            for jj in range(4):
                m = Ins(f"s_add_u32 m0, s{self.sWQd}, {base + u * 2 * WQT + 2056 * (jj >> 1) + 1024 * (jj & 1)}")
                off = (32 * u + 4 * jj) * 8192
                so = Ins(f"s_add_u32 s{self.sT}, s{self.sWo}, {off}") if off else None
                d = Ins(f"buffer_load_dwordx4 v{self.vWQg}, {r4('s', self.SWQ)}, s{self.sT if off else self.sWo} offen{mod(self.cfg['wq'])} lds", tag=tag, lds=lds)
                out.append((m, so, d))
        for i in range(7):
            m = Ins(f"s_add_u32 m0, s{self.sXd}, {base + XOFF + i * XP}")
            so = Ins(f"s_add_u32 s{self.sT}, s{self.sXo}, {i * 16384}") if i else None
            d = Ins(f"buffer_load_dwordx4 v{self.vXg}, {r4('s', self.SX)}, s{self.sT if i else self.sXo} offen{mod(self.cfg['x'])} lds", tag=tag, lds=lds)
            out.append((m, so, d))
        return out

    def q_advance(self):
        return [Ins(f"s_add_u32 s{self.sWo}, s{self.sWo}, {64 * 8192}"), Ins(f"s_add_u32 s{self.sXo}, s{self.sXo}, 128")]

    def kv_dmas(self, slot, tag):
        out = []
        base = slot * ATT_SLOT
        lds = lambda it, tag=tag: (base, base + ATT_SLOT, ev(tag, it), False)
        for j in range(8):
            if j == 0:
                m = Ins(f"s_add_u32 m0, s{self.sKVd}, {base}")
            else:
                m = Ins(f"s_add_u32 m0, m0, s{self.sPad4 if j == 4 else self.sPad}")
            so = Ins(f"s_add_u32 s{self.sKVo}, s{self.sKVo}, 4096") if j == 4 else None
            o = f" offset:{1024 * (j & 3)}" if j & 3 else ""
            d = Ins(f"buffer_load_dwordx4 v{self.vKVg}, {r4('s', self.SKV)}, s{self.sKVo} offen{o}{mod(self.cfg['kv'])} lds", tag=tag, lds=lds)
            out.append((m, so, d))
        post = Ins(f"s_add_u32 s{self.sKVo}, s{self.sKVo}, 4096")
        return out, post

    def q_reads(self, slot, par, tag):
        out = []
        base = Q0 + slot * QSLOT
        lds = lambda it, tag=tag: (base, base + QSLOT, ev(tag, it), False)
        for qt in range(7):
            for u in range(2):
                p, i = self.Bf(par, qt, u)
                out.append(Ins(f"ds_read_b128 {r4(p, i)}, v{self.vXr + slot} offset:{qt * 2 * XP + 64 * u}", lds=lds))
        A = []
        for dt in range(8):
            for u in range(2):
                p, i = self.Af(par, dt, u)
                s, e = dt >> 1, dt & 1
                for half in range(2):
                    A.append(Ins(f"ds_read_b64_tr_b16 {r2(p, i + 2 * half)}, v{self.vWQr + slot * 4 + s} offset:{u * 2 * WQT + 8 * e + 1024 * half}", lds=lds))
        return A, out

    def k_reads(self, slot, tag):
        base = slot * ATT_SLOT
        lds = lambda it, tag=tag: (base, base + ATT_SLOT, ev(tag, it), False)
        return [Ins(f"ds_read_b128 {r4('a', self.Kf(t, s))}, v{self.vKr + (slot >> 1)} offset:{(slot & 1) * ATT_SLOT + 4 * KP * t + 64 * s}", lds=lds)
                for t in range(2) for s in range(4)]

    def v_reads(self, slot, par, tag):
        base = slot * ATT_SLOT
        lds = lambda it, tag=tag: (base, base + ATT_SLOT, ev(tag, it), False)
        return [Ins(f"ds_read_b64_tr_b16 {r2('a', self.Vf(par, dt) + 2 * h2)}, v{self.vVr + (slot >> 1) * 4 + (dt & 3)} offset:{(slot & 1) * ATT_SLOT + 4 * VP * h2 + 128 * (dt >> 2)}", lds=lds)
                for dt in range(8) for h2 in range(2)]

    @staticmethod
    def place_dmas(G, dmas, gaps):
        lo = 0
        for (m, so, d), g in zip(dmas, gaps):
            g1 = G.free_s(g - 1, lo=lo)
            G.put_s(g1, m)
            if so is not None:
                g2 = G.free_s(g - 1, lo=lo)
                G.put_s(g2, so)
            G.put_v(g, d)
            d.meta["prod"] = {"m0": m}
            if so is not None:
                d.meta["prod"][next(iter(so.wr - {"scc"}))] = so
            lo = g + 1

    def emit_serial(self, dmas):
        P = self.P
        for m, so, d in dmas:
            P(m)
            P(so if so is not None else "s_nop 0")
            P(d)

    def q_step(self, par, tagf, reads, dmas_early, dmas_late, mid_barrier, wait_tags, adv, tail=()):
        mf = []
        for dt in range(8):
            for qt in range(7):
                for u in range(2):
                    mf.append(mfma(self.O(qt, dt), r4(*self.Af(par, dt, u)), r4(*self.Bf(par, qt, u))))
        G = Gaps(mf)
        G.put_s(0, Wait(vm=True, vm_tags=wait_tags))
        G.put_s(1, "s_barrier")
        g = 1
        for x in reads:
            G.put_v(g, x)
            g += 1
        nread_end = g
        if dmas_early:
            self.place_dmas(G, dmas_early[0], [4 + 5 * k for k in range(len(dmas_early[0]))])
            G.put_s(G.free_s(44, step=1), dmas_early[1])
        if mid_barrier:
            G.put_s(52, Wait(lg=True, lg_all=True))
            G.put_s(53, "s_barrier")
        if dmas_late:
            n = len(dmas_late)
            step = 3 if n > 14 else 4
            self.place_dmas(G, dmas_late, [56 + step * k for k in range(n)])
        g = 106
        for x in adv:
            g = G.free_s(g, step=1)
            G.put_s(g, x)
        if not mid_barrier:
            G.put_s(100, Wait(lg=True, lg_all=True))
        for k, x in enumerate(tail):
            G.put_s(111 - len(tail) + 1 + k, x)
        G.emit(self.P)

    def att_period(self, k, chunk, mode, tail=()):
        mf = []
        for j in range(7):
            sp = (k + j + 1) & 1
            jn = (j + 1) % 7
            jp = (j - 1) % 7
            vpar = (k if j >= 1 else k - 1) & 1
            pp = (k + j - 1) & 1
            qk = [[mfma(r4("v", self.vS + sp * 8 + t * 4), r4("a", self.Kf(t, s)), self.Q(jn, s), "0" if s == 0 else None) for s in range(4)] for t in range(2)]
            pv = [mfma(self.O(jp, dt), r4("a", self.Vf(vpar, dt)), r4("v", self.vP + pp * 4)) for dt in range(8)]
            mf += qk[0] + pv[:4] + qk[1] + pv[4:]
        G = Gaps(mf)
        nxt = lambda it: ("kv", chunk(it) + 1)
        G.put_s(0, Wait(vm=True, lg=True, lg_all=True, vm_tags=[nxt]))
        G.put_s(1, "s_barrier")
        dm, post = self.kv_dmas(k, lambda it: ("kv", chunk(it) + 4))
        ggaps = [1, 9, 17, 25, 33, 41, 97, 105]
        G.put_v(ggaps[0], dm[0][2])
        self.place_dmas(G, dm[1:], ggaps[1:])
        G.put_s(107, post)
        G.put_s(109, self.kv_dmas((k + 1) & 3, None)[0][0][0])
        rd_next = lambda it: ("kv", chunk(it) + 1)
        vr = self.v_reads((k + 1) & 3, (k + 1) & 1, rd_next)
        kr = self.k_reads((k + 1) & 3, rd_next)
        for i in range(16):
            G.put_v(48 + 1 + 2 * i, vr[i])
        for i in range(8):
            G.put_v(80 + 1 + 2 * i, kr[i])
        G.put_s(95, Wait(lg=True))
        G.put_s(103, Wait(lg=True))
        for j in range(7):
            sp = (k + j) & 1
            S = self.vS + sp * 8
            Pq = self.vP + sp * 4
            b = 16 * j
            for e in range(8):
                if mode == "safe":
                    G.put_v(b + 2 * e, f"v_sub_f32 v{S + e}, v{S + e}, v{self.vM + j}")
                G.put_v(b + 2 * e, f"v_exp_f32 v{S + e}, v{S + e}")
                ga = b + 2 * e + 1
                if ga in ggaps:
                    ga += 4
                G.put_v(ga, f"v_add_f32 v{self.vL + j}, v{self.vL + j}, v{S + e}")
                if e & 1:
                    G.put_v(b + 2 * e + 1, f"v_cvt_pk_bf16_f32 v{Pq + (e >> 1)}, v{S + e - 1}, v{S + e}")
        for i, x in enumerate(tail):
            G.put_s(111 - len(tail) + 1 + i, x)
        G.emit(self.P)
        return G

    def zero16(self, d, z):
        return f"v_mfma_f32_32x32x16_bf16 {d}, {r4('v', z)}, {r4('v', z)}, 0"

    def stamp(self, i):
        if self.cfg["stamp"]:
            self.P(f"s_memtime s[{64 + 4 * i}:{65 + 4 * i}]\ns_memrealtime s[{66 + 4 * i}:{67 + 4 * i}]\ns_waitcnt lgkmcnt(0)")

    def build(self):
        P, c = self.P, self.cfg
        self.stamp(0)
        P(f"""
        s_cmp_ge_u32 s2, 256
        s_cbranch_scc1 L1_end
        s_and_b32 s20, s2, 7
        s_lshr_b32 s21, s2, 3
        s_lshr_b32 s22, s20, 2
        s_mul_i32 s25, s22, 40
        s_add_u32 s26, s0, s25
        s_addc_u32 s27, s1, 0
        s_load_dwordx8 s[36:43], s[26:27], 0
        s_load_dwordx2 s[44:45], s[0:1], 96
        v_lshrrev_b32 v1, 6, v0
        v_and_b32 v0, 63, v0
        v_readfirstlane_b32 s{self.sWV}, v1
        s_and_b32 s23, s20, 3
        s_lshl_b32 s23, s23, 2
        s_and_b32 s24, s21, 3
        s_or_b32 s23, s23, s24
        s_lshr_b32 s24, s21, 2
        s_lshr_b32 s{self.sHH}, s{self.sWV}, 1
        s_and_b32 s{self.sRH}, s{self.sWV}, 1
        s_lshl_b32 s31, s23, 1
        s_add_u32 s31, s31, s{self.sHH}
        """)
        P(f"""
        v_lshrrev_b32 v32, 4, v0
        v_and_b32 v33, 15, v0
        v_lshlrev_b32 v34, 2, v32
        v_xor_b32 v34, v34, v33
        v_lshlrev_b32 v34, 4, v34
        v_lshl_add_u32 v{self.vWQg}, v32, 13, v34
        v_lshrrev_b32 v35, 3, v0
        v_and_b32 v36, 7, v0
        v_lshrrev_b32 v37, 1, v35
        v_xor_b32 v36, v36, v37
        v_lshlrev_b32 v36, 4, v36
        v_lshl_add_u32 v{self.vXg}, v35, 11, v36
        s_mul_i32 s{self.sWQd}, s{self.sHH}, {WQT}
        s_mul_i32 s20, s{self.sRH}, 4112
        s_add_u32 s{self.sWQd}, s{self.sWQd}, s20
        s_mul_i32 s{self.sXd}, s{self.sWV}, {7 * XP}
        s_mov_b32 s{self.sXo}, 0
        s_mov_b32 s{self.sWo}, 0
        s_mul_i32 s20, s24, 224
        s_mul_i32 s21, s{self.sWV}, 56
        s_add_u32 s20, s20, s21
        s_lshl_b32 s20, s20, 11
        s_lshl_b32 s21, s31, 8
        s_lshl_b32 s25, s{self.sRH}, 17
        s_add_u32 s21, s21, s25
        s_waitcnt lgkmcnt(0)
        s_add_u32 s{self.SX}, s36, s20
        s_addc_u32 s{self.SX + 1}, s37, 0
        s_sub_u32 s{self.SX + 2}, {1792 * 2048}, s20
        s_mov_b32 s{self.SX + 3}, 0x20000
        s_add_u32 s{self.SWQ}, s42, s21
        s_addc_u32 s{self.SWQ + 1}, s43, 0
        s_sub_u32 s{self.SWQ + 2}, {1024 * 8192}, s21
        s_mov_b32 s{self.SWQ + 3}, 0x20000
        """)
        self.emit_serial(self.q_dmas(0, ("q", 0)))
        P(self.q_advance())
        self.emit_serial(self.q_dmas(1, ("q", 1)))
        P(self.q_advance())
        P(f"""
        s_cmp_eq_u32 s{self.sRH}, 0
        s_cselect_b32 s{self.SKV}, s38, s40
        s_cselect_b32 s{self.SKV + 1}, s39, s41
        s_cselect_b32 s{self.sPad}, {KP - 1024}, {VP - 1024}
        s_cselect_b32 s21, 0, {2 * KT}
        s_mul_i32 s20, s{self.sRH}, {VT - KT}
        s_add_u32 s20, s20, {KT}
        s_mul_i32 s20, s20, s{self.sHH}
        s_add_u32 s{self.sKVd}, s20, s21
        s_add_u32 s{self.sPad4}, s{self.sPad}, 4096
        s_lshl_b32 s20, s24, 5
        s_add_u32 s20, s20, s31
        s_lshl_b32 s20, s20, 18
        s_add_u32 s{self.SKV}, s{self.SKV}, s20
        s_addc_u32 s{self.SKV + 1}, s{self.SKV + 1}, 0
        s_mov_b32 s{self.SKV + 2}, 262144
        s_mov_b32 s{self.SKV + 3}, 0x20000
        s_mov_b32 s{self.sKVo}, 0
        s_lshl_b32 s20, s22, 3
        s_add_u32 s20, s20, s24
        s_lshl_b32 s20, s20, 1
        s_add_u32 s20, s20, s{self.sRH}
        s_lshl_b32 s20, s20, 5
        s_add_u32 s20, s20, s31
        s_mul_i32 s20, s20, 28672
        s_add_u32 s{self.SO}, s44, s20
        s_addc_u32 s{self.SO + 1}, s45, 0
        s_mov_b32 s{self.SO + 2}, 28672
        s_mov_b32 s{self.SO + 3}, 0x20000
        s_mov_b32 s{self.sC}, {QSCALE}
        s_mov_b32 s{self.sC + 1}, {QSCALE}
        """)
        P(f"""
        v_lshrrev_b32 v34, 2, v33
        v_and_b32 v35, 3, v33
        v_lshlrev_b32 v{self.vKVg}, s{self.sRH}, v32
        v_xor_b32 v{self.vKVg}, v{self.vKVg}, v33
        v_lshlrev_b32 v{self.vKVg}, 4, v{self.vKVg}
        v_lshl_add_u32 v{self.vKVg}, v32, 8, v{self.vKVg}
        v_lshlrev_b32 v{self.vSt}, 4, v0
        s_mul_i32 s20, s{self.sHH}, {WQT}
        s_add_u32 s20, s20, {Q0}
        v_mul_u32_u24 v36, 2056, v32
        v_lshl_add_u32 v36, v34, 8, v36
        v_lshl_add_u32 v36, v35, 4, v36
        v_add_u32 v36, s20, v36
        """)
        for s in range(4):
            P(f"""
            v_xor_b32 v37, {s}, v34
            v_lshl_add_u32 v{self.vWQr + s}, v37, 6, v36
            v_add_u32 v{self.vWQr + 4 + s}, {QSLOT}, v{self.vWQr + s}
            """)
        P(f"""
        s_mul_i32 s20, s{self.sRH}, {14 * XP}
        s_add_u32 s20, s20, {Q0 + XOFF}
        v_lshrrev_b32 v36, 3, v33
        v_mul_u32_u24 v36, {XP}, v36
        v_and_b32 v37, 7, v33
        v_lshl_add_u32 v36, v37, 7, v36
        v_lshrrev_b32 v37, 1, v37
        v_xor_b32 v37, v37, v32
        v_lshl_add_u32 v36, v37, 4, v36
        v_add_u32 v{self.vXr}, s20, v36
        v_add_u32 v{self.vXr + 1}, {QSLOT}, v{self.vXr}
        s_mul_i32 s20, s{self.sHH}, {KT}
        v_mul_u32_u24 v36, {KP}, v34
        v_lshl_add_u32 v36, v35, 8, v36
        v_xor_b32 v37, v35, v32
        v_lshl_add_u32 v36, v37, 4, v36
        v_add_u32 v{self.vKr}, s20, v36
        v_add_u32 v{self.vKr + 1}, {2 * ATT_SLOT}, v{self.vKr}
        s_mul_i32 s20, s{self.sHH}, {VT}
        s_add_u32 s20, s20, {2 * KT}
        v_mul_u32_u24 v36, {VP}, v32
        v_lshl_add_u32 v36, v34, 8, v36
        v_lshl_add_u32 v36, v35, 3, v36
        v_add_u32 v36, s20, v36
        """)
        for dl in range(4):
            P(f"""
            v_xor_b32 v37, {dl}, v34
            v_lshl_add_u32 v{self.vVr + dl}, v37, 5, v36
            v_add_u32 v{self.vVr + 4 + dl}, {2 * ATT_SLOT}, v{self.vVr + dl}
            """)
        z = self.vP
        for i in range(8):
            P(f"v_mov_b32 v{z + i}, 0")
        P("s_nop 1")
        for i in range(12):
            P(self.zero16(f"v[{64 + 16 * i}:{79 + 16 * i}]", z))
        for i in range(2):
            P(self.zero16(f"a[{16 * i}:{15 + 16 * i}]", z))
        P(Wait(vm=True, vm_tags=[("q", 0)]))
        P("s_barrier")
        A, B = self.q_reads(0, 0, ("q", 0))
        for n, x in enumerate(B + A):
            P(x)
            if n % 8 == 7:
                P("s_waitcnt lgkmcnt(7)")
        P(Wait(lg=True, lg_all=True))
        P("s_barrier")
        self.emit_serial(self.q_dmas(0, ("q", 2)))
        P(self.q_advance())
        P(f"s_mov_b32 s{self.sCnt}, 6")
        self.stamp(1)
        P(".p2align 6")
        P.begin_loop("L1_q", 6)
        for h in range(2):
            pf = lambda it, h=h: 2 * it["L1_q"] + h
            A, B = self.q_reads(1 - h, 1 - h, lambda it, pf=pf: ("q", pf(it) + 1))
            tail = []
            if h == 1:
                tail = [Ins(f"s_sub_u32 s{self.sCnt}, s{self.sCnt}, 1"), Ins(f"s_cmp_lg_u32 s{self.sCnt}, 0")]
            self.q_step(h, pf, B + A, None, self.q_dmas(1 - h, lambda it, pf=pf: ("q", pf(it) + 3)), True,
                        [lambda it, pf=pf: ("q", pf(it) + 1)], self.q_advance(), tail)
        P("s_cbranch_scc1 L1_q")
        P.end_loop()
        A, B = self.q_reads(1, 1, ("q", 13))
        self.q_step(0, None, B + A, None, self.q_dmas(1, ("q", 15)), True, [("q", 13)], [])
        A, B = self.q_reads(0, 0, ("q", 14))
        d0, p0 = self.kv_dmas(0, ("kv", 0))
        d1, p1 = self.kv_dmas(1, ("kv", 1))
        self.q_step(1, None, B + A, (d0, p0), d1, True, [("q", 14)], [p1])
        A, B = self.q_reads(1, 1, ("q", 15))
        d2, p2 = self.kv_dmas(2, ("kv", 2))
        d3, p3 = self.kv_dmas(3, ("kv", 3))
        d3[0] = (d3[0][0], p2, d3[0][2])
        self.q_step(0, None, B + A, None, d2 + d3, True, [("q", 15)], [p3])
        self.q_step(1, None, self.k_reads(0, ("kv", 0)) + self.v_reads(0, 0, ("kv", 0)), None, None, False, [("kv", 0)], [])
        self.stamp(2)
        self.q_epilogue()
        self.att_start()
        self.stamp(3)
        self.att_loop("fast", "L1_a")
        self.stamp(4)
        self.o_epilogue()
        self.stamp(5)
        if c["stamp"]:
            self.write_stamps()
        P("s_waitcnt vmcnt(0)")
        P("L1_end:")
        P("s_endpgm")
        return self.P

    def q_epilogue(self):
        P = self.P
        z = self.vP
        T = self.vT
        S = self.vS
        n = 0
        for sh in range(2):
            for qt in range(7):
                for s in (2 * sh, 2 * sh + 1):
                    if qt < 6:
                        src = 64 + (qt * 8 + 2 * s) * 4
                    else:
                        src = S
                        for i in range(8):
                            P(f"v_accvgpr_read_b32 v{S + i}, a{8 * s + i}")
                    for i in range(4):
                        P(f"v_pk_mul_f32 {r2('v', src + 2 * i)}, {r2('v', src + 2 * i)}, {r2('s', self.sC)}")
                    t = T + 4 * (n & 1)
                    for i in range(4):
                        P(f"v_cvt_pk_bf16_f32 v{t + i}, v{src + 2 * i}, v{src + 2 * i + 1}")
                    q = 32 + (qt * 4 + s) * 4
                    for i in range(4):
                        P(f"v_accvgpr_write_b32 a{q + i}, v{t + i}")
                    n += 1
                if qt < 6:
                    b = 64 + (qt * 8 + 4 * sh) * 4
                    P(self.zero16(f"v[{b}:{b + 15}]", z))
                else:
                    P(self.zero16(f"a[{16 * sh}:{16 * sh + 15}]", z))
        for i in range(2):
            b = self.Vf(1, 0) + 16 * i
            P(self.zero16(f"a[{b}:{b + 15}]", z))

    def att_start(self):
        P = self.P
        for j in range(7):
            P(f"v_mov_b32 v{self.vL + j}, 0")
        P(self.kv_dmas(0, None)[0][0][0])
        P("s_nop 3")
        for t in range(2):
            for s in range(4):
                P(mfma(r4("v", self.vS + t * 4), r4("a", self.Kf(t, s)), self.Q(0, s), "0" if s == 0 else None))
        P(f"s_mov_b32 s{self.sCnt}, 8")
        P("s_nop 7")

    def att_loop(self, mode, label):
        P = self.P
        P(".p2align 6")
        P.begin_loop(label, 8)
        for k in range(4):
            tail = []
            if k == 3:
                tail = [Ins(f"s_sub_u32 s{self.sCnt}, s{self.sCnt}, 1"), Ins(f"s_cmp_lg_u32 s{self.sCnt}, 0")]
            G = self.att_period(k, lambda it, k=k: 4 * it[label] + k, mode, tail)
        self.att_over = G.overflow()
        P(f"s_cbranch_scc1 {label}")
        P.end_loop()
        P("s_nop 0")
        for dt in range(8):
            P(mfma(self.O(6, dt), r4("a", self.Vf(1, dt)), r4("v", self.vP + 4)))

    def o_epilogue(self):
        P = self.P
        L, T, S = self.vL, self.vT, self.vS
        for swap in ("v_permlane32_swap_b32", "v_permlane16_swap_b32"):
            for j in range(7):
                P(f"v_mov_b32 v{S + j}, v{L + j}")
            P("s_nop 1")
            for j in range(7):
                P(f"{swap} v{L + j}, v{S + j}")
            for j in range(7):
                P(f"v_add_f32 v{L + j}, v{L + j}, v{S + j}")
        for j in range(7):
            P(f"v_rcp_f32 v{S + 2 * j}, v{L + j}")
        n = 0
        for qt in range(7):
            for u in range(4):
                if qt < 6:
                    src = 64 + (qt * 8 + 2 * u) * 4
                else:
                    src = 64 + 8 * u
                    for i in range(8):
                        P(f"v_accvgpr_read_b32 v{src + i}, a{8 * u + i}")
                for i in range(4):
                    P(f"v_pk_mul_f32 {r2('v', src + 2 * i)}, {r2('v', src + 2 * i)}, {r2('v', S + 2 * qt)} op_sel_hi:[1,0]")
                t = T + 4 * (n & 3)
                for i in range(4):
                    P(f"v_cvt_pk_bf16_f32 v{t + i}, v{src + 2 * i}, v{src + 2 * i + 1}")
                m = u * 7 + qt
                if m & 3 == 0 or True:
                    P(f"s_mov_b32 s{self.sT}, {(m >> 2) * 4096}")
                o = f" offset:{1024 * (m & 3)}" if m & 3 else ""
                P(f"buffer_store_dwordx4 {r4('v', t)}, v{self.vSt}, {r4('s', self.SO)}, s{self.sT} offen{o}{mod(self.cfg['ost'])}")
                n += 1

    def write_stamps(self):
        P = self.P
        P("s_load_dwordx2 s[20:21], s[0:1], 88\ns_waitcnt lgkmcnt(0)")
        P("s_load_dwordx2 s[44:45], s[0:1], 96\ns_waitcnt lgkmcnt(0)")
        P(f"""
        s_lshl_b32 s20, s2, 2
        s_add_u32 s20, s20, s{self.sWV}
        s_lshl_b32 s20, s20, 7
        s_add_u32 s20, s20, {32 << 20}
        s_add_u32 s{self.SO}, s44, s20
        s_addc_u32 s{self.SO + 1}, s45, 0
        s_mov_b32 s{self.SO + 2}, 128
        s_mov_b32 s{self.SO + 3}, 0x20000
        v_mov_b32 v2, 0
        """)
        for i in range(6):
            P(f"v_mov_b32 v32, s{64 + 4 * i}\nv_mov_b32 v33, s{66 + 4 * i}\ns_nop 1\nbuffer_store_dwordx2 v[32:33], v2, {r4('s', self.SO)}, 0 offen offset:{8 * i}\ns_waitcnt vmcnt(0)")


class K2:
    SW, SB, SOUT = 4, 8, 12
    sWV, sWo, sBo, sT, sT2, sLd, sCnt = 28, 46, 47, 48, 49, 50, 51
    vWr = 1
    vWg, vBg, vSt, vX1, vX2, vX3 = 5, 6, 7, 8, 9, 10
    REG = 36864

    @staticmethod
    def acc(a, qt):
        return r4("v", 144 + (a * 7 + qt) * 4) if a < 4 else r4("a", ((a - 4) * 7 + qt) * 4)

    @staticmethod
    def Af(par, a, u):
        return 16 + (par * 16 + a * 2 + u) * 4

    @staticmethod
    def Bf(par, qt, u):
        return 112 + (par * 14 + qt * 2 + u) * 4

    def __init__(self, cfg):
        self.cfg = cfg
        self.P = Prog("k2")

    def w_dmas(self, slot, tag):
        out = []
        base = slot * 18432
        lds = lambda it, tag=tag: (base, base + 18432, ev(tag, it), True)
        for u in range(2):
            for j in range(8):
                m = Ins(f"s_add_u32 m0, s{self.sLd}, {base + u * 9216 + j * VP}")
                off = (32 * u + 4 * j) * 2048
                so = Ins(f"s_add_u32 s{self.sT}, s{self.sWo}, {off}") if off else None
                d = Ins(f"buffer_load_dwordx4 v{self.vWg}, {r4('s', self.SW)}, s{self.sT if off else self.sWo} offen{mod(self.cfg['wo'])} lds", tag=tag, lds=lds)
                out.append((m, so, d))
        return out

    def w_reads(self, slot, par, tag):
        base = slot * 18432
        lds = lambda it, tag=tag: (base, base + 18432, ev(tag, it), True)
        return [Ins(f"ds_read_b64_tr_b16 {r2('v', self.Af(par, a, u) + 2 * h2)}, v{self.vWr + (a & 3)} offset:{base + u * 9216 + 4 * VP * h2 + 128 * (a >> 2)}", lds=lds)
                for a in range(8) for u in range(2) for h2 in range(2)]

    def b_load(self, par, qt, u, rel):
        off = rel + (u * 7 + qt) * 1024
        so = Ins(f"s_add_u32 s{self.sT2}, s{self.sBo}, {off}")
        d = Ins(f"buffer_load_dwordx4 {r4('a', self.Bf(par, qt, u))}, v{self.vBg}, {r4('s', self.SB)}, s{self.sT2} offen{mod(self.cfg['old'])}")
        return so, d

    def step(self, par, pf, tail=()):
        mf = [mfma(self.acc(a, qt), r4("v", self.Af(par, a, u)), r4("a", self.Bf(par, qt, u))) for qt in range(7) for a in range(8) for u in range(2)]
        G = Gaps(mf)
        G.put_s(0, Wait(vm=True, vm_tags=[lambda it: ("w", pf(it) + 1)]))
        for qt in range(1, 7):
            G.put_s(16 * qt - 1, Wait(vm=True))
        G.put_s(111, Wait(vm=True))
        rd = self.w_reads(1 - par, 1 - par, lambda it: ("w", pf(it) + 1))
        g = 1
        busy = set()
        loads = [(2, self.b_load(1 - par, 6, 0, 0)), (4, self.b_load(1 - par, 6, 1, 0))]
        for qt in range(6):
            loads.append((16 * (qt + 1) + 2, self.b_load(par, qt, 0, 14336)))
            loads.append((16 * (qt + 1) + 4, self.b_load(par, qt, 1, 14336)))
        for gg, (so, d) in loads:
            d.meta["prod"] = {f"s{self.sT2}": so}
            G.put_s(gg - 1, so)
            G.put_v(gg, d)
            busy.add(gg)
        for x in rd:
            while g in busy:
                g += 1
            G.put_v(g, x)
            g += 1
        assert g <= 44
        G.put_s(44, Wait(lg=True, lg_all=True))
        gaps = []
        g, prev = 47, 44
        while len(gaps) < 16:
            if g not in busy and sum(1 for q in range(prev + 1, g) if not G.sc[q]) >= 2:
                gaps.append(g)
                prev = g
            g += 1
        assert gaps[-1] < 108, gaps
        K1.place_dmas(G, self.w_dmas(1 - par, lambda it: ("w", pf(it) + 3)), gaps)
        g = 107
        for x in (Ins(f"s_add_u32 s{self.sWo}, s{self.sWo}, 131072"), Ins(f"s_add_u32 s{self.sBo}, s{self.sBo}, 14336")):
            g = G.free_s(g, step=1)
            G.put_s(g, x)
        for i, x in enumerate(tail):
            G.put_s(111 - len(tail) + i, x)
        G.emit(self.P)

    def emit_serial(self, dmas):
        for m, so, d in dmas:
            self.P(m)
            self.P(so if so is not None else "s_nop 0")
            self.P(d)

    def stamp(self, i):
        if self.cfg["stamp"]:
            self.P(f"s_memtime s[{64 + 4 * i}:{65 + 4 * i}]\ns_memrealtime s[{66 + 4 * i}:{67 + 4 * i}]\ns_waitcnt lgkmcnt(0)")

    def build(self):
        P, c = self.P, self.cfg
        self.stamp(0)
        P(f"""
        s_cmp_ge_u32 s2, 256
        s_cbranch_scc1 L2_end
        s_and_b32 s20, s2, 7
        s_lshr_b32 s21, s2, 3
        s_lshr_b32 s22, s20, 2
        s_mul_i32 s25, s22, 40
        s_add_u32 s26, s0, s25
        s_addc_u32 s27, s1, 0
        s_load_dwordx2 s[36:37], s[26:27], 32
        s_load_dwordx2 s[38:39], s[0:1], 80
        s_load_dwordx2 s[40:41], s[0:1], 96
        v_lshrrev_b32 v1, 6, v0
        v_and_b32 v0, 63, v0
        v_readfirstlane_b32 s{self.sWV}, v1
        s_bfe_u32 s23, s20, 0x10001
        s_lshl_b32 s23, s23, 3
        s_lshr_b32 s24, s21, 2
        s_add_u32 s23, s23, s24
        s_and_b32 s24, s20, 1
        s_lshl_b32 s24, s24, 2
        s_and_b32 s21, s21, 3
        s_add_u32 s24, s24, s21
        """)
        P(f"""
        v_lshrrev_b32 v11, 4, v0
        v_and_b32 v12, 15, v0
        s_lshl_b32 s20, s{self.sWV}, 2
        v_lshlrev_b32 v13, 1, v11
        v_xor_b32 v13, v13, v12
        v_xor_b32 v13, s20, v13
        v_lshlrev_b32 v13, 4, v13
        v_lshl_add_u32 v{self.vWg}, v11, 11, v13
        v_lshlrev_b32 v{self.vBg}, 4, v0
        s_mul_i32 s{self.sLd}, s{self.sWV}, {self.REG}
        s_mov_b32 s{self.sWo}, 0
        s_mov_b32 s{self.sBo}, 0
        s_lshl_b32 s20, s{self.sWV}, 21
        s_lshl_b32 s21, s24, 8
        s_add_u32 s20, s20, s21
        s_lshl_b32 s21, s22, 4
        s_add_u32 s21, s21, s23
        s_lshl_b32 s21, s21, 2
        s_add_u32 s21, s21, s{self.sWV}
        s_mul_i32 s21, s21, 229376
        s_waitcnt lgkmcnt(0)
        s_add_u32 s{self.SW}, s36, s20
        s_addc_u32 s{self.SW + 1}, s37, 0
        s_mov_b32 s{self.SW + 2}, {1023 * 2048 + 256}
        s_mov_b32 s{self.SW + 3}, 0x20000
        s_add_u32 s{self.SB}, s40, s21
        s_addc_u32 s{self.SB + 1}, s41, 0
        s_mov_b32 s{self.SB + 2}, 229376
        s_mov_b32 s{self.SB + 3}, 0x20000
        """)
        adv = f"s_add_u32 s{self.sWo}, s{self.sWo}, 131072"
        self.emit_serial(self.w_dmas(0, ("w", 0)))
        P(adv)
        for qt in range(7):
            for u in range(2):
                P(list(self.b_load(0, qt, u, 0)))
        self.emit_serial(self.w_dmas(1, ("w", 1)))
        P(adv)
        for qt in range(6):
            for u in range(2):
                P(list(self.b_load(1, qt, u, 14336)))
        P(f"""
        s_add_u32 s{self.sBo}, s{self.sBo}, 14336
        s_mul_i32 s20, s23, {112 * 4096}
        s_lshl_b32 s21, s22, 11
        s_add_u32 s20, s20, s21
        s_lshl_b32 s21, s24, 8
        s_add_u32 s20, s20, s21
        s_lshl_b32 s21, s{self.sWV}, 6
        s_add_u32 s20, s20, s21
        s_add_u32 s{self.SOUT}, s38, s20
        s_addc_u32 s{self.SOUT + 1}, s39, 0
        s_mov_b32 s{self.SOUT + 2}, {111 * 4096 + 64}
        s_mov_b32 s{self.SOUT + 3}, 0x20000
        v_lshlrev_b32 v13, 4, v11
        v_lshl_add_u32 v{self.vSt}, v12, 12, v13
        v_lshrrev_b32 v13, 2, v12
        v_and_b32 v14, 3, v12
        v_mul_u32_u24 v15, {VP}, v11
        v_lshl_add_u32 v15, v13, 8, v15
        v_lshl_add_u32 v15, v14, 3, v15
        v_add_u32 v15, s{self.sLd}, v15
        """)
        for dl in range(4):
            P(f"v_xor_b32 v14, {dl}, v13\nv_lshl_add_u32 v{self.vWr + dl}, v14, 5, v15")
        P(f"""
        v_add_u32 v{self.vX1}, s{self.sLd}, v{self.vBg}
        s_xor_b32 s20, s{self.sWV}, 2
        s_mul_i32 s20, s20, {self.REG}
        v_add_u32 v{self.vX2}, s20, v{self.vBg}
        s_xor_b32 s20, s{self.sWV}, 3
        s_mul_i32 s20, s20, {self.REG}
        v_add_u32 v{self.vX3}, s20, v{self.vBg}
        """)
        for i in range(4):
            P(f"v_mov_b32 v{12 + i}, 0")
        P("s_nop 1")
        for i in range(7):
            P(f"v_mfma_f32_32x32x16_bf16 v[{144 + 16 * i}:{159 + 16 * i}], v[12:15], v[12:15], 0")
            P(f"v_mfma_f32_32x32x16_bf16 a[{16 * i}:{15 + 16 * i}], v[12:15], v[12:15], 0")
        P(Wait(vm=True, vm_tags=[("w", 0)]))
        for n, x in enumerate(self.w_reads(0, 0, ("w", 0))):
            P(x)
            if n % 8 == 7:
                P("s_waitcnt lgkmcnt(7)")
        P(Wait(lg=True, lg_all=True))
        self.emit_serial(self.w_dmas(0, ("w", 2)))
        P(adv)
        P(f"s_mov_b32 s{self.sCnt}, 8")
        self.stamp(1)
        P(".p2align 6")
        P.begin_loop("L2_g", 8)
        for h in range(2):
            tail = []
            if h == 1:
                tail = [Ins(f"s_sub_u32 s{self.sCnt}, s{self.sCnt}, 1"), Ins(f"s_cmp_lg_u32 s{self.sCnt}, 0")]
            self.step(h, lambda it, h=h: 2 * it["L2_g"] + h, tail)
        P("s_cbranch_scc1 L2_g")
        P.end_loop()
        self.stamp(2)
        self.epilogue()
        self.stamp(3)
        if c["stamp"]:
            self.write_stamps()
        P("s_waitcnt vmcnt(0)")
        P("L2_end:")
        P("s_endpgm")
        return P

    def epilogue(self):
        P = self.P
        T = 16
        P("s_waitcnt vmcnt(0) lgkmcnt(0)")
        P("s_nop 7")
        n = 0
        for a in range(4, 8):
            for qt in range(7):
                P(f"ds_write_b128 v{self.vX1}, {self.acc(a, qt)} offset:{n * 1024}")
                n += 1
                if n % 8 == 0:
                    P("s_waitcnt lgkmcnt(7)")
        P("s_waitcnt lgkmcnt(0)\ns_barrier")
        for n in range(28):
            P(f"ds_read_b128 {r4('v', T + 4 * n)}, v{self.vX2} offset:{n * 1024}")
            if n % 8 == 7:
                P("s_waitcnt lgkmcnt(7)")
        order = list(range(14, 28)) + list(range(14))
        P("s_waitcnt lgkmcnt(0)")
        for n in order[:14]:
            for i in range(4):
                P(f"v_add_f32 v{144 + 4 * n + i}, v{144 + 4 * n + i}, v{T + 4 * n + i}")
            P(f"ds_write_b128 v{self.vX2}, {r4('v', 144 + 4 * n)} offset:{(n - 14) * 1024}")
        for n in order[14:]:
            for i in range(4):
                P(f"v_add_f32 v{144 + 4 * n + i}, v{144 + 4 * n + i}, v{T + 4 * n + i}")
        P("s_waitcnt lgkmcnt(0)\ns_barrier")
        for n in range(14):
            P(f"ds_read_b128 {r4('v', T + 4 * n)}, v{self.vX3} offset:{n * 1024}")
        for qt in range(7):
            P(f"s_waitcnt lgkmcnt({6 - qt})") if False else None
        P("s_waitcnt lgkmcnt(0)")
        for qt in range(7):
            t = 80 + 4 * qt
            for e in range(2):
                n = e * 7 + qt
                for i in range(4):
                    P(f"v_add_f32 v{144 + 4 * n + i}, v{144 + 4 * n + i}, v{T + 4 * n + i}")
            for e in range(2):
                n = e * 7 + qt
                for i in range(2):
                    P(f"v_cvt_pk_bf16_f32 v{t + 2 * e + i}, v{144 + 4 * n + 2 * i}, v{144 + 4 * n + 2 * i + 1}")
            P(f"s_mov_b32 s{self.sT}, {qt * 65536}")
            P("s_nop 0")
            P(f"v_permlane32_swap_b32 v{t}, v{t + 2}\nv_permlane32_swap_b32 v{t + 1}, v{t + 3}")
            P("s_nop 0")
            P(f"v_permlane16_swap_b32 v{t}, v{t + 2}\ns_nop 0\nv_permlane16_swap_b32 v{t + 1}, v{t + 3}")
            P(f"buffer_store_dwordx4 {r4('v', t)}, v{self.vSt}, {r4('s', self.SOUT)}, s{self.sT} offen{mod(self.cfg['outst'])}")

    def write_stamps(self):
        P = self.P
        P(f"""
        s_lshl_b32 s20, s2, 2
        s_add_u32 s20, s20, s{self.sWV}
        s_lshl_b32 s20, s20, 7
        s_add_u32 s20, s20, {33 << 20}
        s_add_u32 s{self.SOUT}, s40, s20
        s_addc_u32 s{self.SOUT + 1}, s41, 0
        s_mov_b32 s{self.SOUT + 2}, 128
        s_mov_b32 s{self.SOUT + 3}, 0x20000
        v_mov_b32 v2, 0
        """)
        for i in range(4):
            P(f"v_mov_b32 v32, s{64 + 4 * i}\nv_mov_b32 v33, s{66 + 4 * i}\ns_nop 1\nbuffer_store_dwordx2 v[32:33], v2, {r4('s', self.SOUT)}, 0 offen offset:{8 * i}\ns_waitcnt vmcnt(0)")


HEADER = """; Two independent MHA blocks (A, B) on a cached K / V, outputs concatenated on the last axis.
"""


def kdesc(name, sg=102):
    return f""".amdhsa_kernel {name}
  .amdhsa_next_free_vgpr 512
  .amdhsa_next_free_sgpr {sg}
  .amdhsa_accum_offset 256
  .amdhsa_group_segment_fixed_size 0
  .amdhsa_kernarg_size 104
  .amdhsa_user_sgpr_count 2
  .amdhsa_user_sgpr_kernarg_segment_ptr 1
  .amdhsa_system_sgpr_workgroup_id_x 1
.end_amdhsa_kernel
"""


def finish(P, verbose):
    tr = P.trace()
    resolve_waits(tr)
    errs = check_trace(tr, verbose)
    if errs:
        for e in errs[:30]:
            print("ERR", e)
        raise SystemExit(f"{P.name}: {len(errs)} errors")
    return P.text()


def generate(cfg=None, verbose=True):
    c = dict(CFG)
    c.update(cfg or {})
    k1 = K1(c)
    t1 = finish(k1.build(), verbose)
    if verbose:
        print("  attention overflow cycles per period:", k1.att_over)
    t2 = finish(K2(c).build(), verbose)
    out = [HEADER,
           f"; @launch kernel=qattn_kernel grid=(256,1,1) block=(256,1,1) lds={LDS1}",
           f"; @launch kernel=oproj_kernel grid=(256,1,1) block=(256,1,1) lds={LDS2}",
           '.amdgcn_target "amdgcn-amd-amdhsa--gfx950"', ".text"]
    for name, t in (("qattn_kernel", t1), ("oproj_kernel", t2)):
        out += [f".globl {name}", ".p2align 8", f".type {name},@function", f"{name}:", t]
    out += ['.section .rodata,"a"']
    for name in ("qattn_kernel", "oproj_kernel"):
        out += [".p2align 6", kdesc(name)]
    return "\n".join(out) + "\n"


if __name__ == "__main__":
    cfg = {}
    outp = f"cdna_kernels/{NAME}.s"
    for a in sys.argv[1:]:
        if a.startswith("-o"):
            outp = a[2:]
        else:
            k, v = a.split("=")
            cfg[k] = {"True": True, "False": False}.get(v, v)
    open(outp, "w").write(generate(cfg))
    print("wrote", outp)
```
